```python
import torch

def _softmax(x, axis=-1):
    return torch.softmax(x, dim=axis)
def _gelu(x):
    return torch.nn.functional.gelu(x, approximate="tanh")
def _silu(x):
    return torch.nn.functional.silu(x)
def _sigmoid(x):
    return torch.sigmoid(x)
def _layernorm(x, axis=-1, eps=1e-5):
    m = x.mean(dim=axis, keepdim=True)
    v = x.var(dim=axis, keepdim=True, unbiased=False)
    return (x - m) / torch.sqrt(v + eps)
def _scatter_add(tgt, idx, src, axis=0):
    return tgt.clone().index_add_(axis, idx, src)
def _segment_sum(src, seg, n):
    out = torch.zeros((n,) + src.shape[1:], dtype=src.dtype)
    return out.index_add_(0, seg, src)
def _pad(x, pw):
    flat = tuple(v for pair in reversed(pw) for v in pair)
    return torch.nn.functional.pad(x, flat)

kernel_name = 'gather_scatter__cheap_equivariant_egnn__graph'

def setup_inputs():

    _w = (lambda a: (lambda t: t.to(torch.bfloat16) if t.is_floating_point() else t)(torch.as_tensor(a)))
    N, deg, D, De = 10000, 64, 64, max(0, 1)
    E = N * deg
    return {
        "h": _w((lambda *s: torch.randn(*s, dtype=torch.bfloat16) * 0.1)(N, D)),
        "pos": _w((lambda *s: torch.randn(*s, dtype=torch.bfloat16) * 0.8)(N, 3)),
        "e_attr": _w((lambda *s: torch.randn(*s, dtype=torch.bfloat16) * 0.8)(E, De)),
        "src": _w((lambda lo, hi, *s: torch.randint(lo, hi, s))(0, N, E).to(torch.int64)),
        "dst": _w((lambda lo, hi, *s: torch.randint(lo, hi, s))(0, N, E).to(torch.int64)),
        "w_e": _w(0.1 * (lambda *s: torch.randn(*s, dtype=torch.bfloat16) * 0.8)(2 * D + 1 + De, D)),
        "w_x": _w(0.1 * (lambda *s: torch.randn(*s, dtype=torch.bfloat16) * 0.1)(D, 1)),
        "w_h": _w(0.1 * (lambda *s: torch.randn(*s, dtype=torch.bfloat16) * 0.1)(2 * D, D)),
    }

def reference(h, pos, e_attr, src, dst, w_e, w_x, w_h):
    N, D = h.shape[0], h.shape[1]
    diff = pos[dst] - pos[src]
    dist2 = torch.sum(diff * diff, axis=-1, keepdims=True)
    e_in = torch.concatenate([h[dst], h[src], dist2, e_attr], axis=-1)
    m_ij = _silu(e_in @ w_e)
    coord_scale = m_ij @ w_x
    pos_new = pos + _segment_sum(diff * coord_scale, dst, N)
    m_i = _segment_sum(m_ij, dst, N)
    h_new = h + _silu(torch.concatenate([h, m_i], axis=-1) @ w_h)
    return h_new, pos_new
```

```python
import re

class Asm:
    def __init__(self):
        self.lines = []
    def __call__(self, s):
        for ln in s.split("\n"):
            ln = ln.strip()
            if ln: self.lines.append(ln)
    def label(self, n): self.lines.append(n + ":")
    def comment(self, c): self.lines.append("; " + c)
    def text(self):
        out = []
        for l in self.lines:
            if l.endswith(":") or l.startswith(";") or l.startswith("."): out.append(l)
            else: out.append("    " + l)
        return "\n".join(out) + "\n"

def vr(a, n=1):
    return f"v{a}" if n == 1 else f"v[{a}:{a+n-1}]"
def sr(a, n=1):
    return f"s{a}" if n == 1 else f"s[{a}:{a+n-1}]"

TRANS = ("v_exp_f32", "v_rcp_f32", "v_log_f32", "v_rsq_f32", "v_sqrt_f32", "v_sin_f32", "v_cos_f32", "v_exp_f16", "v_rcp_f16")
def regs_of(op):
    op = op.strip()
    op = op.lstrip("-").strip("|")
    m = re.fullmatch(r"([vas])(\d+)", op)
    if m: return [(m.group(1), int(m.group(2)))]
    m = re.fullmatch(r"([vas])\[(\d+):(\d+)\]", op)
    if m: return [(m.group(1), i) for i in range(int(m.group(2)), int(m.group(3)) + 1)]
    if op == "vcc": return [("s", 106), ("s", 107)]
    if op == "exec": return [("s", 126), ("s", 127)]
    if op == "m0": return [("s", 124)]
    return []

def parse(line):
    line = line.split(";")[0].strip()
    if not line or line.endswith(":") or line.startswith("."): return None
    parts = line.split(None, 1)
    mn = parts[0]
    rest = parts[1] if len(parts) > 1 else ""
    ops = []; depth = 0; cur = ""
    for ch in rest:
        if ch == "[": depth += 1
        if ch == "]": depth -= 1
        if ch == "," and depth == 0:
            ops.append(cur.strip()); cur = ""
        else: cur += ch
    if cur.strip(): ops.append(cur.strip())
    if ops:
        toks = ops[-1].split()
        ops[-1] = toks[0]
        mods = toks[1:]
    else: mods = []
    return mn, ops, mods, line

def classify(mn, ops, mods):
    k = {"valu": False, "mfma": False, "trans": False, "ds": False, "vmem": False, "salu": False, "w": set(), "r": set(), "dpp": False, "nop": 0,
         "cread": set(), "abread": set()}
    base = mn.replace("_e32", "").replace("_e64", "")
    if mn.startswith("v_mfma"):
        k["mfma"] = True
        k["w"] = set(regs_of(ops[0])); k["abread"] = set(regs_of(ops[1])) | set(regs_of(ops[2])); k["cread"] = set(regs_of(ops[3]))
        k["r"] = k["abread"] | k["cread"]
    elif mn.startswith("v_"):
        k["valu"] = True
        k["trans"] = any(base.startswith(t) for t in TRANS)
        k["dpp"] = "_dpp" in mn or any(m.startswith(("row_", "quad_perm", "wave_")) for m in mods)
        if mn.startswith("v_cmp"):
            k["w"] = set(regs_of(ops[0])); k["r"] = set(sum([regs_of(o) for o in ops[1:]], []))
        elif mn.startswith("v_permlane32_swap") or mn.startswith("v_permlane16_swap"):
            k["w"] = set(regs_of(ops[0])) | set(regs_of(ops[1])); k["r"] = set(k["w"]); k["perml"] = True
        elif mn.startswith(("v_readlane", "v_readfirstlane")):
            k["w"] = set(regs_of(ops[0])); k["r"] = set(sum([regs_of(o) for o in ops[1:]], [])); k["rdl"] = True
        elif mn.startswith(("v_add_co", "v_sub_co", "v_addc_co")):
            k["w"] = set(regs_of(ops[0])) | set(regs_of(ops[1])); k["r"] = set(sum([regs_of(o) for o in ops[2:]], []))
        else:
            k["w"] = set(regs_of(ops[0])); k["r"] = set(sum([regs_of(o) for o in ops[1:]], []))
            if base.startswith(("v_fmac", "v_mac")) or "_dpp" in mn or "sdwa" in mn: k["r"] |= k["w"]
            if base.startswith("v_cndmask_b32") and len(ops) == 3: k["r"] |= {("s", 106), ("s", 107)}
        k["sdwa"] = "sdwa" in mn
    elif mn.startswith("ds_"):
        k["ds"] = True
        if mn.startswith(("ds_read", "ds_bpermute", "ds_permute")) or "_rtn" in mn:
            k["w"] = set(regs_of(ops[0])); k["r"] = set(sum([regs_of(o) for o in ops[1:]], []))
        else:
            k["r"] = set(sum([regs_of(o) for o in ops], []))
    elif mn.startswith(("global_", "buffer_", "flat_")):
        k["vmem"] = True
        if "load" in mn and "lds" not in mods and "_lds_" not in mn:
            k["w"] = set(regs_of(ops[0])); k["r"] = set(sum([regs_of(o) for o in ops[1:]], []))
        else:
            k["r"] = set(sum([regs_of(o) for o in ops], []))
            if "lds" in mods or "_lds_" in mn: k["r"] |= {("s", 124)}; k["dma"] = True
        k["store"] = "store" in mn
        k["wide"] = ("x4" in mn or "x3" in mn) and "store" in mn
    elif mn == "s_nop":
        k["nop"] = int(ops[0], 0) + 1
    elif mn.startswith("s_"):
        k["salu"] = True
        if mn.startswith(("s_cmp", "s_cbranch", "s_branch", "s_waitcnt", "s_barrier", "s_endpgm", "s_sleep", "s_setprio", "s_bitcmp")):
            k["r"] = set(sum([regs_of(o) for o in ops], []))
        else:
            k["w"] = set(regs_of(ops[0])) if ops else set(); k["r"] = set(sum([regs_of(o) for o in ops[1:]], []))
            if "saveexec" in mn: k["w"] |= {("s", 126), ("s", 127)}
    return k

def check_hazards(lines, window=24):
    ins = []
    for ln in lines:
        p = parse(ln)
        if p is None: continue
        mn, ops, mods, txt = p
        ins.append((classify(mn, ops, mods), txt))
    probs = []
    for i, (c, txt) in enumerate(ins):
        dist = 0
        for j in range(i - 1, max(-1, i - window - 1), -1):
            p, ptxt = ins[j]
            need = 0; why = ""
            pv = {r for r in p["w"] if r[0] in "va"}; ps = {r for r in p["w"] if r[0] == "s"}
            if p["valu"]:
                if c["mfma"] and pv & c["r"]: need, why = 2, "VALU->MFMA"
                if c.get("dpp") and pv & c["r"]: need, why = max(need, 2), "VALU->DPP"
                if c.get("perml") and pv & c["r"]: need, why = max(need, 2), "VALU->permlane"
                if c.get("rdl") and pv & c["r"]: need, why = max(need, 1), "VALU->readlane"
                if p["trans"] and c["valu"] and not c["trans"] and pv & c["r"]: need, why = max(need, 1), "trans->VALU"
                if p["trans"] and (c["ds"] or c["vmem"]) and pv & c["r"]: need, why = max(need, 1), "trans->mem"
                if p.get("sdwa") and c["valu"] and pv & c["r"]: need, why = max(need, 1), "sdwa->VALU"
                if ps and c["valu"] and ps & c["r"]: need, why = max(need, 4 if c.get("rdl") else 2), "VALU sgpr->VALU"
                if ps and c["vmem"] and ps & c["r"]: need, why = max(need, 5), "VALU sgpr->VMEM"
            if p["mfma"]:
                if (c["valu"] or c["ds"] or c["vmem"]) and pv & (c["r"] | c["w"]): need, why = 12, "MFMA D->VALU/mem"
                if c["mfma"] and pv & c["abread"]: need, why = 12, "MFMA D->MFMA AB"
                if c["mfma"] and pv & c["cread"] and c["cread"] != pv: need, why = max(need, 10), "MFMA D->MFMA C partial"
                if c["valu"] and p["cread"] & c["w"] and not (pv & c["w"]): need, why = max(need, 7), "MFMA C read->VALU write"
            if p["salu"] and ("s", 124) in p["w"] and c.get("dma"): need, why = max(need, 1), "m0->DMA"
            if p["vmem"] and p.get("wide") and c["valu"] and (p["r"] & {r for r in c["w"] if r[0] == "v"}): need, why = max(need, 2), "wide store WAR"
            if need > dist: probs.append(f"{why}: need {need} have {dist}:\n    {ptxt}\n    {txt}")
            dist += p["nop"] if p["nop"] else 1
            if dist >= 20: break
    return probs
```

```python
import sys
from asmlib import *

NAME = "gather_scatter__cheap_equivariant_egnn__graph"
STOP = None
for a in sys.argv[1:]:
    if a.startswith("stop="): STOP = a[5:]
OUT = [a for a in sys.argv[1:] if a.endswith(".s")]
OUT = OUT[0] if OUT else "cdna_kernels/%s.s" % NAME

NWG = 250; CHUNK = 2560; NPB = 40
SCAP = 3072
LOG2E = 1.4426950408889634; LN2 = 0.6931471805599453
import struct
def f2u(f): return struct.unpack("<I", struct.pack("<f", f))[0]
NLOG2E = f2u(-LOG2E); NLN2 = f2u(-LN2)
REC_OFF = 0
OFF_OFF = 5 << 20
EPOCH_OFF = (5 << 20) + (768 << 10)
BT_OFF = 6 << 20
DUMP_OFF = 16 << 20
L_STG = 0; L_POS = 0
L_CNT2 = 60416; L_START = 60672; L_FLAGS = 60928
L_CNT1 = 60992; L_OFF1 = 62016
L_GM = 63040
L_CH = 66176; CHS = 6160
L_D2A = L_CH + 4 * CHS
L_MACC = 96976; MS = 272
L_P32 = 110032; PS = 384
L_W = 66176; L_WH = L_W + 17408
L_RECS = L_W + 17408 + 16384
L_AT = 128464
L_HROW = 138704
L_SE = 143824
L_END = 156368
assert L_D2A + CHS == L_MACC and L_MACC + 48 * MS == L_P32 and L_P32 + 48 * PS == L_AT
assert L_RECS + 20480 <= L_AT and L_AT + 10240 == L_HROW and L_HROW + 5120 == L_SE and L_SE + 12544 == L_END

S_WG = 2; S_WAVE = 3
S_H = 8; S_POS = 10; S_E = 12; S_SRC = 14; S_DST = 16; S_WE = 18; S_WX = 20; S_WH = 22
S_OUT = 24; S_DBG = 26; S_WS = 28
S_T32 = 30; S_T8 = 31
SRD_POS = 32; SRD_WE = 36; SRD_WH = 40; SRD_H = 44; SRD_BT = 48
S_ONE2 = 52
S_T = 54; S_T1 = 55; S_NODE0 = 56; S_STG = 57; S_MODE = 58; S_R = 59; S_I = 60; S_MAXLEN = 61; S_NT = 62; S_FIRST = 63
S_MASK = 64
S_A = 96; S_B = 97; S_C = 98; S_D = 99
S_EP = 100
S_TMP = 4

V_TID = 0; V_LANE = 1; V_N = 2; V_HALF = 3
V_T = 4
I0 = 8; I1 = 12; AEXT = 16; BEXT0 = 20; BEXT1 = 24
AFR = 28; S_OP = 44; D0 = 52; D1 = 68; TMP = 84; MPK = 100
D2_0 = 108; D2_1 = 124
DMA = 140; AFRA = 148; GMR = 152
V_IDXB = 156; V_SEB = 157; V_D2B = 158; V_GMB = 159; V_LC = 160
V_A0 = 161; V_A1 = 162; V_S0 = 163; V_S1 = 164
V_COL = 165; V_WX0 = 166; V_WX1 = 167; V_FM = 168; V_FP = 169; V_POS = 170; V_ONE = 171
D3H = 172; WHB = 188
V_PAT = 204
V_LT = 208
V_L16 = 209
V_X = 212

a = Asm()
def barrier(): a("s_barrier")
def nop(n): a(f"s_nop {n}")

def dump_and_end(tag):
    a.comment("DEBUG DUMP " + tag)
    a("s_waitcnt vmcnt(0) lgkmcnt(0)"); barrier()
    a(f"s_mul_i32 s4, s{S_WG}, 163840")
    a(f"s_add_u32 s4, s4, {DUMP_OFF}")
    a(f"s_add_u32 s4, s{S_WS}, s4"); a(f"s_addc_u32 s5, s{S_WS+1}, 0")
    a(f"v_lshlrev_b32 v4, 4, v{V_TID}")
    a("s_mov_b32 s6, 0")
    lab = "L_dump_" + tag
    a.label(lab)
    a(f"v_cmp_gt_u32 vcc, {L_END}, v4")
    a("s_and_saveexec_b64 s[96:97], vcc")
    a(f"s_cbranch_execz {lab}_e")
    a("ds_read_b128 v[212:215], v4")
    a("s_waitcnt lgkmcnt(0)")
    a("global_store_dwordx4 v4, v[212:215], s[4:5]")
    a("s_waitcnt vmcnt(0)")
    a.label(lab + "_e")
    a("s_mov_b64 exec, s[96:97]")
    a("v_add_u32 v4, 8192, v4")
    a("s_add_u32 s6, s6, 1"); a("s_cmp_lt_u32 s6, 20"); a(f"s_cbranch_scc1 {lab}")
    a("s_endpgm")

def dpp_scan(v):
    for sh in (1, 2, 4, 8):
        nop(1); a(f"v_add_u32_dpp v{v}, v{v}, v{v} row_shr:{sh} row_mask:0xf bank_mask:0xf bound_ctrl:0")
    nop(1); a(f"v_add_u32_dpp v{v}, v{v}, v{v} row_bcast:15 row_mask:0xa bank_mask:0xf")
    nop(1); a(f"v_add_u32_dpp v{v}, v{v}, v{v} row_bcast:31 row_mask:0xc bank_mask:0xf")

a.label(NAME + "_kernel")
a(f"s_cmp_ge_u32 s{S_WG}, {NWG}")
a("s_cbranch_scc1 L_end")
a("s_load_dwordx16 s[8:23], s[0:1], 0")
a("s_load_dwordx4 s[24:27], s[0:1], 64")
a("s_load_dwordx2 s[28:29], s[0:1], 80")
a(f"v_and_b32 v{V_LANE}, 63, v0")
a(f"v_and_b32 v{V_N}, 31, v0")
a(f"v_bfe_u32 v{V_HALF}, v0, 5, 1")
a(f"v_lshrrev_b32 v4, 6, v0")
a(f"v_lshlrev_b32 v{V_L16}, 4, v{V_LANE}")
a(f"v_readfirstlane_b32 s{S_WAVE}, v4")
a("s_waitcnt lgkmcnt(0)")
a(f"s_add_u32 s4, s{S_WS}, {EPOCH_OFF}"); a(f"s_addc_u32 s5, s{S_WS+1}, 0")
a(f"s_load_dwordx2 s[{S_EP}:{S_EP+1}], s[4:5], 0")
E_D4 = 28; E_D1 = 32; E_S4 = 36; E_S1 = 40; E_E4 = 44; E_E1 = 46
a(f"s_mul_i32 s6, s{S_WG}, 10240")
a(f"s_add_u32 s{S_DST}, s{S_DST}, s6"); a(f"s_addc_u32 s{S_DST+1}, s{S_DST+1}, 0")
a(f"s_add_u32 s{S_SRC}, s{S_SRC}, s6"); a(f"s_addc_u32 s{S_SRC+1}, s{S_SRC+1}, 0")
a(f"s_mul_i32 s6, s{S_WG}, 5120")
a(f"s_add_u32 s{S_E}, s{S_E}, s6"); a(f"s_addc_u32 s{S_E+1}, s{S_E+1}, 0")
a("v_lshlrev_b32 v4, 4, v0")
a(f"global_load_dwordx4 v[{E_D4}:{E_D4+3}], v4, s[{S_DST}:{S_DST+1}]")
a(f"global_load_dwordx4 v[{E_S4}:{E_S4+3}], v4, s[{S_SRC}:{S_SRC+1}]")
a("v_lshlrev_b32 v5, 3, v0")
a(f"global_load_dwordx2 v[{E_E4}:{E_E4+1}], v5, s[{S_E}:{S_E+1}]")
a("v_lshlrev_b32 v6, 2, v0"); a("v_add_u32 v6, 8192, v6")
a(f"global_load_dword v{E_D1}, v6, s[{S_DST}:{S_DST+1}]")
a(f"global_load_dword v{E_S1}, v6, s[{S_SRC}:{S_SRC+1}]")
a("v_lshlrev_b32 v7, 1, v0"); a("v_add_u32 v7, 4096, v7")
a(f"global_load_short_d16_hi v{E_E1}, v7, s[{S_E}:{S_E+1}]")
def srd(d, src, nrec, stride=0):
    a(f"s_mov_b32 s{d}, s{src}")
    a(f"s_and_b32 s{d+1}, s{src+1}, 0xffff")
    if stride: a(f"s_or_b32 s{d+1}, s{d+1}, {stride << 16}")
    a(f"s_mov_b32 s{d+2}, {nrec}")
    a(f"s_mov_b32 s{d+3}, 0x20000")
srd(SRD_POS, S_POS, 60000); srd(SRD_WE, S_WE, 16640); srd(SRD_WH, S_WH, 16384); srd(SRD_H, S_H, 1280000)
a(f"s_add_u32 s6, s{S_WS}, {BT_OFF}"); a(f"s_addc_u32 s7, s{S_WS+1}, 0")
srd(SRD_BT, 6, 10001, 128)
a(f"v_and_b32 v4, 7, v{V_LANE}")
a(f"v_lshrrev_b32 v5, 4, v{V_LANE}")
a("v_xor_b32 v4, v4, v5")
a(f"v_lshlrev_b32 v{DMA+1}, 4, v4")
a(f"v_xor_b32 v{DMA+3}, 64, v{DMA+1}")
a(f"v_mov_b32 v{DMA+5}, v{DMA+1}"); a(f"v_mov_b32 v{DMA+7}, v{DMA+3}")
def dma_lin(srdreg, lds_sgpr, soff_sgpr, vaddr=V_L16):
    a(f"s_mov_b32 m0, s{lds_sgpr}"); nop(0)
    a(f"buffer_load_dwordx4 v{vaddr}, s[{srdreg}:{srdreg+3}], s{soff_sgpr} offen lds")
for (srdreg, base) in ((SRD_WE, L_W), (SRD_WH, L_WH)):
    for k in (0, 8):
        a(f"s_add_u32 s4, s{S_WAVE}, {k}"); a("s_lshl_b32 s4, s4, 10"); a(f"s_add_u32 s5, s4, {base}")
        dma_lin(srdreg, 5, 4)
a(f"s_cmp_lg_u32 s{S_WAVE}, 0"); a("s_cbranch_scc1 L_nowe16")
a("s_mov_b32 s4, 16384"); a(f"s_mov_b32 s5, {L_W+16384}")
dma_lin(SRD_WE, 5, 4)
a.label("L_nowe16")
a(f"s_cmp_lt_u32 s{S_WAVE}, 3"); a("s_cbranch_scc1 L_nohrow")
a(f"s_sub_u32 s4, s{S_WAVE}, 3")
a(f"s_lshl_b32 s5, s4, 3")
a(f"s_mul_i32 s6, s{S_WG}, 40"); a("s_add_u32 s6, s6, s5")
a(f"v_lshrrev_b32 v4, 3, v{V_LANE}"); a("v_add_u32 v4, s6, v4"); a("v_lshlrev_b32 v4, 7, v4")
a("s_and_b32 s7, s4, 1"); a("s_lshl_b32 s7, s7, 6")
a(f"v_xor_b32 v5, s7, v{DMA+1}"); a("v_add_u32 v4, v4, v5")
a("s_lshl_b32 s5, s4, 10"); a(f"s_add_u32 s5, s5, {L_HROW}"); a("s_mov_b32 s4, 0")
dma_lin(SRD_H, 5, 4, vaddr=4)
a.label("L_nohrow")
def pos_dma():
    for k in range(8):
        a(f"s_add_u32 s4, s{S_WAVE}, {8*k}")
        if k == 7:
            a("s_cmp_ge_u32 s4, 59"); a("s_cbranch_scc1 L_posdone%d" % pos_dma.n)
        a("s_lshl_b32 s4, s4, 10")
        dma_lin(SRD_POS, 4, 4)
    a.label("L_posdone%d" % pos_dma.n); pos_dma.n += 1
pos_dma.n = 0
pos_dma()
a(f"v_lshlrev_b32 v4, 1, v{V_N}")
a(f"global_load_short_d16_hi v{V_WX0}, v4, s[{S_WX}:{S_WX+1}]")
a(f"global_load_short_d16_hi v{V_WX1}, v4, s[{S_WX}:{S_WX+1}] offset:64")
a("v_and_b32 v4, 255, v0"); a("v_lshrrev_b32 v4, 1, v4"); a("v_min_u32 v4, 119, v4")
a(f"s_mul_i32 s4, s{S_WG}, 240")
a("v_lshlrev_b32 v4, 1, v4"); a("v_add_u32 v4, s4, v4")
a(f"global_load_short_d16_hi v{V_POS}, v4, s[{S_POS}:{S_POS+1}]")
NLATE = 3
def se_prefill():
    a(f"v_mov_b32 v4, 10000"); a("v_mov_b32 v5, 10000")
    a(f"v_lshlrev_b32 v6, 3, v0"); a(f"v_add_u32 v6, {L_SE}, v6")
    for k in range(3): a(f"ds_write_b64 v6, v[4:5] offset:{k*4096}")
    a(f"v_lshlrev_b32 v6, 2, v0"); a(f"v_add_u32 v6, {L_SE+12288}, v6")
    a("v_cmp_gt_u32 vcc, 64, v0"); a("s_and_saveexec_b64 s[4:5], vcc")
    a("ds_write_b32 v6, v4"); a("s_mov_b64 exec, s[4:5]")
a("v_lshlrev_b32 v6, 2, v0"); a("v_mov_b32 v4, 0")
a(f"ds_write_b32 v6, v4 offset:{L_CNT2}")
se_prefill()
a(f"v_mov_b32 v{V_ONE}, 1")
a("s_waitcnt lgkmcnt(0)")
barrier()
a(f"s_add_u32 s{S_EP}, s{S_EP}, 1"); a(f"s_addc_u32 s{S_EP+1}, s{S_EP+1}, 0")
a(f"s_mov_b32 s{S_T32}, s{S_EP}"); a(f"s_lshl_b32 s{S_T8}, s{S_EP+1}, 24")
REC1 = 60
B4 = 48; RANK1 = 70; OFF1R = 75
a("s_mov_b32 s6, -160"); a("s_mov_b32 s7, 0xffff0000")
a(f"s_waitcnt vmcnt({4+7+NLATE})")
for k in range(5):
    d = E_D4 + k if k < 4 else E_D1
    s = E_S4 + k if k < 4 else E_S1
    a(f"v_mul_u32_u24 v4, 52429, v{d}")
    a(f"v_lshrrev_b32 v4, 21, v4")
    a(f"v_lshlrev_b32 v5, 2, v{d}")
    a(f"v_mad_i32_i24 v{REC1+2*k+1}, v4, s6, v5")
    a(f"v_lshlrev_b32 v{B4+k}, 2, v4")
    a(f"ds_add_rtn_u32 v{RANK1+k}, v{B4+k}, v{V_ONE} offset:{L_CNT1}")
    if k < 4:
        e = E_E4 + (k >> 1)
        if k & 1: a(f"v_and_or_b32 v{REC1+2*k}, v{e}, s7, v{s}")
        else: a(f"v_lshl_or_b32 v{REC1+2*k}, v{e}, 16, v{s}")
    else:
        a(f"v_and_or_b32 v{REC1+2*k}, v{E_E1}, s7, v{s}")
a(f"s_waitcnt vmcnt({7+NLATE}) lgkmcnt(0)")
barrier()
a(f"ds_read_b128 v[28:31], v{V_L16} offset:{L_CNT1}")
a("s_waitcnt lgkmcnt(0)")
a("v_add_u32 v32, v28, v29"); a("v_add_u32 v33, v32, v30"); a("v_add_u32 v34, v33, v31")
a("v_mov_b32 v35, v34")
dpp_scan(35)
a("v_sub_u32 v36, v35, v34")
a("v_add_u32 v37, v36, v28"); a("v_add_u32 v38, v36, v32"); a("v_add_u32 v39, v36, v33")
a(f"ds_write_b128 v{V_L16}, v[36:39] offset:{L_OFF1}")
a("s_waitcnt lgkmcnt(0)")
for k in range(5): a(f"ds_read_b32 v{OFF1R+k}, v{B4+k} offset:{L_OFF1}")
a("v_lshlrev_b32 v4, 2, v0"); a("v_and_b32 v4, 1023, v4")
a(f"ds_read_b32 v40, v4 offset:{L_CNT1}"); a(f"ds_read_b32 v41, v4 offset:{L_OFF1}")
a(f"s_mov_b32 s6, {L_RECS}")
a("s_waitcnt lgkmcnt(0)")
for k in range(5):
    a(f"v_add_u32 v5, v{OFF1R+k}, v{RANK1+k}")
    a(f"v_lshl_add_u32 v5, v5, 3, s6")
    a(f"ds_write_b64 v5, v[{REC1+2*k}:{REC1+2*k+1}]")
a("v_lshl_or_b32 v42, v40, 12, v41"); a(f"v_or_b32 v42, s{S_T8}, v42"); a(f"v_mov_b32 v43, s{S_T32}")
a("s_waitcnt lgkmcnt(0)")
barrier()
a(f"v_lshrrev_b32 v4, 1, v{V_N}"); a("v_and_b32 v4, 7, v4"); a(f"v_xor_b32 v4, v4, v{V_HALF}"); a("v_lshlrev_b32 v4, 4, v4")
a(f"v_lshlrev_b32 v5, 7, v{V_N}")
for t in range(4):
    a(f"v_xor_b32 v6, {32*t}, v4"); a(f"v_add_u32 v{V_PAT+t}, v5, v6")
a(f"v_lshlrev_b32 v4, 3, v{V_HALF}"); a(f"v_bfe_u32 v5, v{V_LANE}, 2, 2"); a("v_add_u32 v4, v4, v5"); a("v_lshlrev_b32 v4, 7, v4")
a(f"v_bfe_u32 v5, v{V_LANE}, 4, 1"); a("v_lshlrev_b32 v5, 5, v5"); a("v_add_u32 v4, v4, v5")
a(f"v_and_b32 v5, 3, v{V_LANE}"); a("v_lshlrev_b32 v5, 3, v5"); a(f"v_add_u32 v{V_LT}, v4, v5")
def load_hop(dst):
    a(f"s_lshr_b32 s4, s{S_WAVE}, 1"); a("s_and_b32 s4, s4, 1"); a("s_lshl_b32 s4, s4, 12"); a(f"s_add_u32 s4, s4, {L_HROW}")
    for t in range(4):
        a(f"v_add_u32 v4, s4, v{V_PAT+t}")
        a(f"ds_read_b128 v[{dst+4*t}:{dst+4*t+3}], v4")
def load_wop(dst, base):
    a(f"s_and_b32 s4, s{S_WAVE}, 1"); a("s_lshl_b32 s4, s4, 6"); a(f"s_add_u32 s4, s4, {base}")
    a(f"v_add_u32 v4, s4, v{V_LT}")
    for t in range(4):
        for u in range(2):
            a(f"ds_read_b64_tr_b16 v[{dst+4*t+2*u}:{dst+4*t+2*u+1}], v4 offset:{t*2048+u*512}")
a(f"s_cmp_ge_u32 s{S_WAVE}, 4"); a("s_cbranch_scc1 L_bjob")
a("v_lshlrev_b32 v4, 4, v0"); a(f"v_add_u32 v5, {L_RECS}, v4")
for j in range(5): a(f"ds_read_b128 v[{44+4*j}:{47+4*j}], v5 offset:{j*4096}")
a(f"s_mul_i32 s4, s{S_WG}, 20480"); a(f"s_add_u32 s4, s{S_WS}, s4"); a(f"s_addc_u32 s5, s{S_WS+1}, 0")
for j in range(5):
    a(f"s_waitcnt lgkmcnt({4-j})")
    a(f"global_store_dwordx4 v4, v[{44+4*j}:{47+4*j}], s[4:5] sc1")
    if j < 4: a("s_add_u32 s4, s4, 4096"); a("s_addc_u32 s5, s5, 0")
a("s_branch L_p2done")
a.label("L_bjob")
HOP = 44; WOP = 60; DT = 76
load_hop(HOP); load_wop(WOP, L_W + 64 * 128)
a("s_waitcnt lgkmcnt(0)")
for t in range(4):
    c = "0" if t == 0 else f"v[{DT}:{DT+15}]"
    a(f"v_mfma_f32_32x32x16_bf16 v[{DT}:{DT+15}], v[{WOP+4*t}:{WOP+4*t+3}], v[{HOP+4*t}:{HOP+4*t+3}], {c}")
a(f"s_lshr_b32 s4, s{S_WAVE}, 1"); a("s_and_b32 s4, s4, 1"); a("s_lshl_b32 s5, s4, 5")
a(f"s_mul_i32 s6, s{S_WG}, 40"); a("s_add_u32 s5, s5, s6"); a("s_lshl_b32 s5, s5, 7")
a(f"s_and_b32 s6, s{S_WAVE}, 1"); a("s_lshl_b32 s6, s6, 6"); a("s_add_u32 s5, s5, s6")
a(f"v_lshlrev_b32 v4, 7, v{V_N}"); a(f"v_lshlrev_b32 v5, 4, v{V_HALF}"); a("v_add3_u32 v4, v4, v5, s5")
a(f"s_add_u32 s6, s{S_WS}, {BT_OFF}"); a(f"s_addc_u32 s7, s{S_WS+1}, 0")
a(f"s_mov_b32 s5, {NLOG2E:#x}")
nop(7)
def pack_store_rows(D, O, scale_sgpr=None):
    pass
for r in range(16): a(f"v_mul_f32 v{DT+r}, s5, v{DT+r}")
for q in range(4):
    a(f"v_cvt_pk_bf16_f32 v{HOP+2*q}, v{DT+4*q}, v{DT+4*q+1}")
    a(f"v_cvt_pk_bf16_f32 v{HOP+2*q+1}, v{DT+4*q+2}, v{DT+4*q+3}")
nop(1)
for k in (0, 2):
    a(f"v_permlane32_swap_b32 v{HOP+2*k}, v{HOP+2*k+2}")
    a(f"v_permlane32_swap_b32 v{HOP+2*k+1}, v{HOP+2*k+3}")
a("s_cmp_eq_u32 s4, 0"); a("s_cselect_b32 s4, 32, 8")
a(f"v_cmp_gt_u32 vcc, s4, v{V_N}"); a("s_and_saveexec_b64 s[96:97], vcc")
a(f"global_store_dwordx4 v4, v[{HOP}:{HOP+3}], s[6:7] sc1")
a(f"global_store_dwordx4 v4, v[{HOP+4}:{HOP+7}], s[6:7] offset:32 sc1")
a("s_mov_b64 exec, s[96:97]")
a(f"s_cmp_lg_u32 s{S_WG}, 0"); a("s_cbranch_scc1 L_p2done")
a(f"s_cmp_lg_u32 s{S_WAVE}, 4"); a("s_cbranch_scc1 L_p2done")
for r in range(4): a(f"v_mov_b32 v{60+r}, 0")
a(f"v_add_u32 v4, {10000*128}, v{V_L16}")
a(f"v_cmp_gt_u32 vcc, 8, v{V_LANE}"); a("s_and_saveexec_b64 s[96:97], vcc")
a("global_store_dwordx4 v4, v[60:63], s[6:7] sc1")
a("s_mov_b64 exec, s[96:97]")
a.label("L_p2done")
a("s_waitcnt vmcnt(0)")
barrier()
a(f"s_cmp_ge_u32 s{S_WAVE}, 4"); a("s_cbranch_scc1 L_pubdone")
a(f"s_lshl_b32 s4, s{S_WG}, 3"); a(f"s_add_u32 s4, s4, {OFF_OFF}")
a(f"s_add_u32 s4, s{S_WS}, s4"); a(f"s_addc_u32 s5, s{S_WS+1}, 0")
a("v_lshlrev_b32 v4, 11, v0")
a(f"v_cmp_gt_u32 vcc, {NWG}, v0"); a("s_and_saveexec_b64 s[96:97], vcc")
a("global_store_dwordx2 v4, v[42:43], s[4:5] sc1")
a("s_mov_b64 exec, s[96:97]")
a.label("L_pubdone")
if STOP == "p1": dump_and_end("p1")

a(f"v_lshlrev_b32 v4, 3, v{V_HALF}"); a(f"v_sub_u32 v4, v{V_N}, v4")
a("s_mov_b32 s4, 0x3f80"); a("s_mov_b32 s5, 0x3f800000")
for u, base in ((0, I0), (1, I1)):
    if u == 1: a("v_subrev_u32 v4, 16, v4")
    for i in range(4):
        a(f"v_cmp_eq_u32 vcc, {2*i}, v4"); a(f"v_cmp_eq_u32 s[96:97], {2*i+1}, v4")
        a(f"v_mov_b32 v5, s4"); a(f"v_mov_b32 v6, s5")
        a(f"v_cndmask_b32_e64 v5, 0, v5, vcc"); a(f"v_cndmask_b32_e64 v6, 0, v6, s[96:97]")
        a(f"v_or_b32 v{base+i}, v5, v6")
a(f"v_lshrrev_b32 v4, 4, v{V_N}"); a("v_lshlrev_b32 v4, 1, v4"); a(f"v_bfe_u32 v5, v{V_N}, 2, 1"); a("v_add_u32 v4, v4, v5")
a(f"v_add_u32 v6, 2, v{V_HALF}")
a("v_mov_b32 v7, 0x3f803f80")
a(f"v_cmp_eq_u32 vcc, v4, v{V_HALF}"); a(f"v_cmp_eq_u32 s[96:97], v4, v6"); nop(1)
a(f"v_cndmask_b32_e64 v{AEXT}, 0, v7, vcc"); a(f"v_cndmask_b32_e64 v{AEXT+1}, 0, v7, s[96:97]")
a(f"v_lshlrev_b32 v4, 1, v{V_N}"); a(f"v_add_u32 v4, {L_W+128*128}, v4")
X = V_X
a(f"ds_read_u16_d16_hi v{X}, v4"); a(f"ds_read_u16_d16_hi v{X+1}, v4 offset:64")
a(f"ds_read_u16_d16_hi v{X+2}, v4 offset:128"); a(f"ds_read_u16_d16_hi v{X+3}, v4 offset:192")
a(f"s_mov_b32 s4, {NLOG2E:#x}"); a("s_mov_b32 s5, 0xffff0000")
a(f"v_cmp_eq_u32 s[96:97], 0, v{V_HALF}")
a("s_waitcnt lgkmcnt(0)")
for i in range(4):
    w = X + i
    a(f"v_mul_f32 v{w}, s4, v{w}")
    a(f"v_cvt_pk_bf16_f32 v4, v{w}, v{w}"); a(f"v_and_b32 v4, s5, v4")
    a(f"v_sub_f32 v5, v{w}, v4")
    a(f"v_cvt_pk_bf16_f32 v5, v5, v5"); a(f"v_and_b32 v5, s5, v5")
    a(f"v_cndmask_b32_e64 v4, v5, v4, s[96:97]")
    dst = (BEXT0 if (i & 1) == 0 else BEXT1)
    if i < 2: a(f"v_lshrrev_b32 v{dst+3}, 16, v4")
    else: a(f"v_mov_b32 v{dst+2}, v4")
a(f"s_mov_b32 s4, {NLN2:#x}")
a(f"v_mul_f32 v{V_WX0}, s4, v{V_WX0}"); a(f"v_mul_f32 v{V_WX1}, s4, v{V_WX1}")
a(f"s_lshl_b32 s{S_STG}, s{S_WAVE}, 12")
for t in range(4): a(f"v_add_u32 v{AFRA+t}, s{S_STG}, v{V_PAT+t}")
a(f"v_lshlrev_b32 v4, 2, v{V_N}"); a(f"v_add_u32 v{V_COL}, {L_AT}, v4")
a(f"v_mul_u32_u24 v5, {MS}, v{V_HALF}"); a("v_add_u32 v5, v5, v4"); a(f"v_add_u32 v{V_FM}, {L_MACC}, v5")
a(f"v_mul_u32_u24 v5, {PS}, v{V_HALF}"); a("v_add_u32 v5, v5, v4"); a(f"v_add_u32 v{V_FP}, {L_P32}, v5")
a(f"s_mov_b32 s{S_ONE2}, 1.0"); a(f"s_mov_b32 s{S_ONE2+1}, 1.0")
a(f"s_cmp_ge_u32 s{S_WAVE}, 4"); a("s_cbranch_scc1 L_p3done")
HOP = 44; WOP = 60; DT = 76; WOP2 = 92
load_hop(HOP); load_wop(WOP, L_W); load_wop(WOP2, L_WH); load_wop(WHB, L_WH + 64 * 128)
a("s_waitcnt lgkmcnt(0)")
for t in range(4):
    c = "0" if t == 0 else f"v[{DT}:{DT+15}]"
    a(f"v_mfma_f32_32x32x16_bf16 v[{DT}:{DT+15}], v[{HOP+4*t}:{HOP+4*t+3}], v[{WOP+4*t}:{WOP+4*t+3}], {c}")
for t in range(4):
    c = "0" if t == 0 else f"v[{D3H}:{D3H+15}]"
    a(f"v_mfma_f32_32x32x16_bf16 v[{D3H}:{D3H+15}], v[{WOP2+4*t}:{WOP2+4*t+3}], v[{HOP+4*t}:{HOP+4*t+3}], {c}")
a(f"s_lshr_b32 s4, s{S_WAVE}, 1"); a("s_lshl_b32 s5, s4, 13")
a(f"s_and_b32 s6, s{S_WAVE}, 1"); a("s_lshl_b32 s6, s6, 7"); a("s_add_u32 s5, s5, s6")
a(f"v_lshlrev_b32 v4, 10, v{V_HALF}"); a(f"v_add3_u32 v4, v4, v{V_COL}, s5")
a(f"s_mov_b32 s6, {NLOG2E:#x}"); a("s_mov_b32 s7, 0xffff0000")
nop(3)
def aprime(r):
    a(f"v_mul_f32 v5, s6, v{DT+r}")
    a(f"v_cvt_pk_bf16_f32 v6, v5, v5"); a(f"v_and_b32 v6, s7, v6")
    a(f"v_sub_f32 v5, v5, v6")
    a(f"v_cvt_pk_bf16_f32 v6, v6, v5")
    a(f"ds_write_b32 v4, v6 offset:{(8*(r>>2)+(r&3))*256}")
for r in range(4): aprime(r)
a("s_cmp_lg_u32 s4, 0"); a("s_cbranch_scc1 L_p3done")
for r in range(4, 16): aprime(r)
a.label("L_p3done")

G = 100
LEN = 224; START = 228; CK = 232; LE = 236
V_G8 = 240; V_M3 = 241; V_RO = 242
a(f"v_lshrrev_b32 v4, 3, v{V_LANE}"); a(f"s_lshl_b32 s4, s{S_WAVE}, 3"); a("v_add_u32 v4, s4, v4")
a(f"v_lshlrev_b32 v{V_G8}, 3, v4")
a(f"v_cmp_gt_u32 vcc, {NWG-192}, v4"); nop(1); a(f"v_cndmask_b32_e64 v{V_M3}, 0, -1, vcc")
a(f"v_mul_u32_u24 v{V_RO}, 20480, v4")
a(f"v_and_b32 v5, 7, v{V_LANE}"); a("v_lshlrev_b32 v5, 1, v5")
for q in range(2):
    for k in range(2): a(f"v_add_u32 v{CK+2*q+k}, {16*q+k}, v5")
a(f"v_lshlrev_b32 v{V_RO+1}, 3, v5")
a(f"v_add_u32 v{V_RO}, v{V_RO}, v{V_RO+1}")
a(f"s_lshl_b32 s4, s{S_WG}, 11"); a(f"s_add_u32 s4, s4, {OFF_OFF}")
a(f"s_add_u32 s4, s{S_WS}, s4"); a(f"s_addc_u32 s5, s{S_WS+1}, 0")
a("s_mov_b32 s6, 0x4000")
a.label("L_poll")
for i in range(4): a(f"global_load_dwordx2 v[{G+2*i}:{G+2*i+1}], v{V_G8}, s[4:5] offset:{i*512} sc1")
a("s_waitcnt vmcnt(0)")
for i in range(4):
    a(f"v_xor_b32 v{X+i}, s{S_T8}, v{G+2*i}"); a(f"v_lshrrev_b32 v{X+i}, 24, v{X+i}")
    a(f"v_xor_b32 v4, s{S_T32}, v{G+2*i+1}"); a(f"v_or_b32 v{X+i}, v{X+i}, v4")
a(f"v_and_b32 v{X+3}, v{X+3}, v{V_M3}")
a(f"v_or3_b32 v4, v{X}, v{X+1}, v{X+2}"); a(f"v_or_b32 v4, v4, v{X+3}")
a("v_cmp_ne_u32 vcc, 0, v4")
a("s_cbranch_vccz L_polldone")
a("s_sub_u32 s6, s6, 1"); a("s_cmp_eq_u32 s6, 0"); a("s_cbranch_scc1 L_polldone")
a("s_sleep 2")
a("s_branch L_poll")
a.label("L_polldone")
for i in range(4):
    a(f"v_and_b32 v{START+i}, 0xfff, v{G+2*i}"); a(f"v_bfe_u32 v{LEN+i}, v{G+2*i}, 12, 12")
a(f"v_and_b32 v{LEN+3}, v{LEN+3}, v{V_M3}")
a(f"v_max_u32 v4, v{LEN}, v{LEN+1}"); a(f"v_max3_u32 v4, v4, v{LEN+2}, v{LEN+3}")
a(f"v_mov_b32 v5, {L_FLAGS}")
a("s_mov_b32 s4, 0x01010101"); a("s_mov_b32 s5, 0x01010101"); a("s_mov_b64 exec, s[4:5]")
a("ds_max_u32 v5, v4")
a("s_mov_b64 exec, -1")
a(f"s_mov_b32 s{S_MODE}, 0"); a(f"s_mov_b32 s{S_R}, 0"); a(f"s_mov_b32 s{S_I}, 0"); a(f"s_mov_b32 s{S_FIRST}, 1")

RECA = 28
RANK = 60; STV = 76
def slot(q, i, k): return (q * 4 + i) * 2 + k
a.label("L_batch")
a(f"s_cmp_eq_u32 s{S_MODE}, 0"); a("s_cbranch_scc0 L_slowlen")
for i in range(4): a(f"v_min_u32 v{LE+i}, 32, v{LEN+i}")
a("s_branch L_lendone")
a.label("L_slowlen")
a(f"s_lshl_b32 s4, s{S_R}, 5")
for i in range(4):
    a(f"v_subrev_u32 v4, s4, v{LEN+i}")
    a(f"v_max_i32 v4, 0, v4"); a(f"v_min_u32 v4, 32, v4")
    a(f"s_cmp_eq_u32 s{S_I}, {i}"); a("s_cselect_b32 s5, -1, 0")
    a(f"v_and_b32 v{LE+i}, s5, v4")
a.label("L_lendone")
for q in range(2):
    for i in range(4):
        for k in range(2):
            m = S_MASK + 2 * slot(q, i, k)
            a(f"v_cmp_lt_u32 s[{m}:{m+1}], v{CK+2*q+k}, v{LE+i}")
a(f"s_lshl_b32 s6, s{S_R}, 8")
for i in range(4):
    a(f"v_lshl_add_u32 v{X+i}, v{START+i}, 3, v{V_RO}"); a(f"v_add_u32 v{X+i}, s6, v{X+i}")
a(f"s_mov_b64 s[96:97], s[{S_WS}:{S_WS+1}]")
for i in range(4):
    if i: a(f"v_add_u32 v{X+i}, {i*64*20480}, v{X+i}")
nop(1)
for q in range(2):
    for i in range(4):
        m = S_MASK + 2 * slot(q, i, 0)
        a(f"s_mov_b64 exec, s[{m}:{m+1}]")
        r = RECA + 16 * q + 4 * i
        a(f"global_load_dwordx4 v[{r}:{r+3}], v{X+i}, s[96:97] offset:{128*q} sc1")
for q in range(2):
    for i in range(4):
        a(f"s_waitcnt vmcnt({7-(q*4+i)})")
        for k in range(2):
            m = S_MASK + 2 * slot(q, i, k); r = RECA + 16 * q + 4 * i + 2 * k
            a(f"s_mov_b64 exec, s[{m}:{m+1}]")
            a(f"ds_add_rtn_u32 v{RANK+slot(q,i,k)}, v{r+1}, v{V_ONE} offset:{L_CNT2}")
a("s_mov_b64 exec, -1")
a("s_waitcnt lgkmcnt(0)")
barrier()
a(f"s_cmp_eq_u32 s{S_FIRST}, 0"); a("s_cbranch_scc1 L_noep")
a(f"s_cmp_lg_u32 s{S_WG}, 0"); a("s_cbranch_scc1 L_noep")
a(f"s_cmp_lg_u32 s{S_WAVE}, 7"); a("s_cbranch_scc1 L_noep")
a(f"s_add_u32 s4, s{S_WS}, {EPOCH_OFF}"); a(f"s_addc_u32 s5, s{S_WS+1}, 0")
a(f"v_mov_b32 v4, s{S_EP}"); a(f"v_mov_b32 v5, s{S_EP+1}"); a("v_mov_b32 v6, 0")
a("s_mov_b64 exec, 1")
a("global_store_dwordx2 v6, v[4:5], s[4:5]")
a("s_mov_b64 exec, -1")
a.label("L_noep")
a(f"v_lshlrev_b32 v4, 2, v{V_LANE}")
a(f"ds_read_b32 v5, v4 offset:{L_CNT2}")
a(f"v_mov_b32 v6, {L_FLAGS}"); a("ds_read_b32 v7, v6")
a("s_waitcnt lgkmcnt(0)")
a("v_add_u32 v5, 7, v5"); a("v_and_b32 v5, -8, v5"); a("v_max_u32 v5, 8, v5")
a(f"v_cmp_gt_u32 vcc, {NPB}, v{V_LANE}"); nop(1); a("v_cndmask_b32_e64 v5, 0, v5, vcc")
a(f"v_mov_b32 v{X}, v5")
dpp_scan(X)
a(f"v_sub_u32 v5, v{X}, v5")
a(f"v_readfirstlane_b32 s{S_MAXLEN}, v7")
nop(0)
a(f"v_readlane_b32 s4, v{X}, 63")
a("s_add_u32 s4, s4, 31"); a("s_and_b32 s4, s4, -32")
a(f"s_lshr_b32 s{S_NT}, s4, 5")
a(f"s_cmp_lg_u32 s{S_MODE}, 0"); a("s_cbranch_scc1 L_noovf")
a(f"s_cmp_gt_u32 s4, {SCAP}"); a("s_cbranch_scc1 L_ovf")
a(f"s_cmp_gt_u32 s{S_MAXLEN}, 32"); a("s_cbranch_scc0 L_noovf")
a.label("L_ovf")
a(f"s_mov_b32 s{S_MODE}, 1")
barrier()
a(f"v_lshlrev_b32 v4, 2, v{V_LANE}"); a("v_mov_b32 v5, 0"); a(f"ds_write_b32 v4, v5 offset:{L_CNT2}")
a("s_waitcnt lgkmcnt(0)")
barrier()
a("s_branch L_batch")
a.label("L_noovf")
a(f"v_mov_b32 v6, s4"); a(f"v_cmp_gt_u32 vcc, {NPB}, v{V_LANE}"); nop(1); a("v_cndmask_b32 v5, v6, v5, vcc")
a(f"v_lshlrev_b32 v5, 2, v5"); a(f"v_add_u32 v5, {L_SE}, v5")
a(f"ds_write_b32 v4, v5 offset:{L_START}")
a("s_waitcnt lgkmcnt(0)")
for s_ in range(16):
    q, i, k = s_ >> 3, (s_ >> 1) & 3, s_ & 1
    m = S_MASK + 2 * s_; r = RECA + 16 * q + 4 * i + 2 * k
    a(f"s_mov_b64 exec, s[{m}:{m+1}]")
    a(f"ds_read_b32 v{STV+s_}, v{r+1} offset:{L_START}")
a("s_mov_b64 exec, -1")
a(f"v_mul_u32_u24 v4, 43, v{V_LANE}"); a("v_lshrrev_b32 v4, 9, v4")
a(f"v_mul_u32_u24 v5, 12, v4"); a(f"v_sub_u32 v5, v{V_LANE}, v5")
a(f"s_mul_i32 s5, s{S_WAVE}, 5"); a("v_add_u32 v4, s5, v4")
a(f"v_min_u32 v4, 39, v4")
a(f"v_lshlrev_b32 v6, 2, v4")
a(f"ds_read_b32 v{X}, v6 offset:{L_START}"); a(f"ds_read_b32 v{X+1}, v6 offset:{L_START+4}")
a(f"v_lshlrev_b32 v{X+2}, 18, v4"); a(f"v_lshlrev_b32 v{X+3}, 8, v4")
a("s_waitcnt lgkmcnt(0)")
a(f"v_subrev_u32 v{X}, {L_SE}, v{X}"); a(f"v_subrev_u32 v{X+1}, {L_SE}, v{X+1}")
a(f"v_lshrrev_b32 v{X}, 5, v{X}"); a(f"v_lshrrev_b32 v{X+1}, 5, v{X+1}")
a(f"v_add_u32 v{X}, v{X}, v5")
a(f"v_cmp_gt_u32 s[98:99], 60, v{V_LANE}")
a.label("L_gmfill")
a(f"v_cmp_lt_u32 vcc, v{X}, v{X+1}"); a("s_and_b64 vcc, vcc, s[98:99]")
a("s_cbranch_vccz L_gmdone")
a("s_mov_b64 exec, vcc")
a(f"v_lshlrev_b32 v6, 3, v{X}")
a(f"ds_write_b64 v6, v[{X+2}:{X+3}] offset:{L_GM}")
a("s_mov_b64 exec, -1")
a(f"v_add_u32 v{X}, 12, v{X}")
a("s_branch L_gmfill")
a.label("L_gmdone")
for s_ in range(16):
    q, i, k = s_ >> 3, (s_ >> 1) & 3, s_ & 1
    m = S_MASK + 2 * s_; r = RECA + 16 * q + 4 * i + 2 * k
    a(f"s_mov_b64 exec, s[{m}:{m+1}]")
    a(f"v_lshl_add_u32 v{STV+s_}, v{RANK+s_}, 2, v{STV+s_}")
    a(f"ds_write_b32 v{STV+s_}, v{r}")
a("s_mov_b64 exec, -1")
a(f"s_cmp_eq_u32 s{S_FIRST}, 0"); a("s_cbranch_scc1 L_nozero")
for r in range(4): a(f"v_mov_b32 v{X+r}, 0")
a("v_lshlrev_b32 v4, 4, v0"); a(f"v_add_u32 v4, {L_MACC}, v4")
for k in range(3): a(f"ds_write_b128 v4, v[{X}:{X+3}] offset:{k*8192}")
a(f"v_cmp_gt_u32 vcc, {(31488-3*8192)//16}, v0"); a("s_and_saveexec_b64 s[96:97], vcc")
a(f"ds_write_b128 v4, v[{X}:{X+3}] offset:{3*8192}")
a("s_mov_b64 exec, s[96:97]")
a(f"s_mov_b32 s{S_FIRST}, 0")
a.label("L_nozero")
a("s_waitcnt vmcnt(0) lgkmcnt(0)")
barrier()
if STOP == "a2": dump_and_end("a2")
PB = 28
def pbr(j, k): return PB + 36 * j + k
a(f"s_lshl_b32 s4, s{S_NT}, 4")
a(f"s_mul_i32 s5, s{S_WG}, 240")
a("s_mov_b32 s6, 60000"); a("s_mov_b32 s7, 0xffff0000")
for j in range(3):
    a(f"v_add_u32 v4, {512*j}, v0")
    m = S_MASK + 2 * j
    a(f"v_cmp_gt_u32 s[{m}:{m+1}], s4, v4")
    a(f"v_lshlrev_b32 v5, 3, v4"); a(f"v_add_u32 v5, {L_SE}, v5")
    a(f"v_lshrrev_b32 v6, 2, v4"); a("v_lshlrev_b32 v6, 3, v6")
    a(f"v_lshlrev_b32 v{pbr(j,3)}, 2, v4"); a(f"v_add_u32 v{pbr(j,3)}, {L_CH}, v{pbr(j,3)}")
    a(f"s_mov_b64 exec, s[{m}:{m+1}]")
    a(f"ds_read_b64 v[{pbr(j,0)}:{pbr(j,1)}], v5")
    a(f"ds_read_b32 v{pbr(j,2)}, v6 offset:{L_GM+4}")
    a("s_mov_b64 exec, -1")
for j in range(3):
    m = S_MASK + 2 * j
    a(f"s_waitcnt lgkmcnt({2*(2-j)+3*j})")
    a(f"s_mov_b64 exec, s[{m}:{m+1}]")
    ad = pbr(j, 4); a0 = pbr(j, 5); a1 = pbr(j, 6); o0 = pbr(j, 7); o1 = pbr(j, 8)
    a(f"v_lshrrev_b32 v{ad}, 8, v{pbr(j,2)}"); a(f"v_mov_b32 v4, 6"); a(f"v_mad_u32_u24 v{ad}, v{ad}, v4, s5")
    for k, ak, ok, c in ((0, a0, o0, "0x3f80"), (1, a1, o1, "0x3f800000")):
        a(f"v_mul_u32_u24_sdwa v{ak}, v{pbr(j,k)}, v4 dst_sel:DWORD dst_unused:UNUSED_PAD src0_sel:WORD_0 src1_sel:DWORD")
        nop(0)
        a(f"v_cmp_ne_u32 vcc, s6, v{ak}")
        a(f"v_mov_b32 v5, {c}")
        nop(0)
        a(f"v_cndmask_b32 v{ak}, v{ad}, v{ak}, vcc")
        a(f"v_cndmask_b32_e64 v{ok}, 0, v5, vcc")
    a(f"ds_read_b64 v[{pbr(j,10)}:{pbr(j,11)}], v{ad}")
    a(f"ds_read_b64 v[{pbr(j,12)}:{pbr(j,13)}], v{a0}")
    a(f"ds_read_b64 v[{pbr(j,14)}:{pbr(j,15)}], v{a1}")
    a("s_mov_b64 exec, -1")

for j in range(3):
    m = S_MASK + 2 * j
    a(f"s_waitcnt lgkmcnt({3*(2-j)+5*j})")
    a(f"s_mov_b64 exec, s[{m}:{m+1}]")
    pd = pbr(j, 10); ps = [pbr(j, 12), pbr(j, 14)]
    u = pbr(j, 16)
    a(f"v_lshlrev_b32 v{u}, 16, v{pd}"); a(f"v_and_b32 v{u+1}, s7, v{pd}"); a(f"v_lshlrev_b32 v{u+2}, 16, v{pd+1}")
    for k in range(2):
        d = u + 3 + 3 * k
        a(f"v_lshlrev_b32 v{d}, 16, v{ps[k]}"); a(f"v_and_b32 v{d+1}, s7, v{ps[k]}"); a(f"v_lshlrev_b32 v{d+2}, 16, v{ps[k]+1}")
        for c in range(3): a(f"v_sub_f32 v{d+c}, v{u+c}, v{d+c}")
    cx = u + 9
    for c in range(3): a(f"v_cvt_pk_bf16_f32 v{cx+c}, v{u+3+c}, v{u+6+c}")
    for c in range(3):
        a(f"v_lshlrev_b32 v{u+3+c}, 16, v{cx+c}"); a(f"v_and_b32 v{u+6+c}, s7, v{cx+c}")
    for k in range(2):
        d = u + 3 + 3 * k; o = u + 12 + k
        a(f"v_mul_f32 v{o}, v{d}, v{d}"); a(f"v_fmac_f32 v{o}, v{d+1}, v{d+1}"); a(f"v_fmac_f32 v{o}, v{d+2}, v{d+2}")
    a(f"v_cvt_pk_bf16_f32 v{u+14}, v{u+12}, v{u+13}")
    a(f"v_or_b32 v{u+15}, v{pbr(j,7)}, v{pbr(j,8)}")
    w = pbr(j, 3)
    a(f"ds_write_b32 v{w}, v{u+15}")
    for c in range(3): a(f"ds_write_b32 v{w}, v{cx+c} offset:{(c+1)*CHS}")
    a(f"ds_write_b32 v{w}, v{u+14} offset:{4*CHS}")
    a("s_mov_b64 exec, -1")
a("s_waitcnt lgkmcnt(0)")
barrier()
if STOP == "b": dump_and_end("b")

a(f"s_mul_i32 s4, s{S_WAVE}, s{S_NT}"); a(f"s_lshr_b32 s{S_T}, s4, 3")
a(f"s_add_u32 s4, s4, s{S_NT}"); a(f"s_lshr_b32 s{S_T1}, s4, 3")
a(f"s_cmp_ge_u32 s{S_T}, s{S_T1}"); a("s_cbranch_scc1 L_loopdone")
a(f"s_lshl_b32 s4, s{S_T}, 7")
a(f"v_bfe_u32 v4, v{V_LANE}, 5, 1"); a("v_lshlrev_b32 v4, 3, v4")
a(f"v_bfe_u32 v5, v{V_LANE}, 4, 1"); a("v_lshlrev_b32 v5, 1, v5")
a(f"v_bfe_u32 v6, v{V_LANE}, 3, 1"); a("v_add3_u32 v4, v4, v5, v6"); a("v_lshlrev_b32 v4, 2, v4")
a(f"s_add_u32 s5, s4, {L_SE}"); a(f"v_add_u32 v{V_IDXB}, s5, v4")
a(f"v_and_b32 v4, 0x13, v{V_N}"); a(f"v_and_b32 v5, 4, v{V_N}"); a("v_lshlrev_b32 v5, 1, v5")
a(f"v_and_b32 v6, 8, v{V_N}"); a("v_lshrrev_b32 v6, 1, v6"); a("v_or3_b32 v4, v4, v5, v6")
a(f"v_lshlrev_b32 v5, 2, v4"); a(f"v_add_u32 v{V_SEB}, s5, v5")
a(f"s_lshl_b32 s4, s{S_T}, 6"); a(f"s_add_u32 s5, s4, {L_D2A}")
a(f"v_lshlrev_b32 v5, 1, v4"); a(f"v_add_u32 v{V_D2B}, s5, v5")
a(f"s_lshl_b32 s5, s{S_T}, 5"); a(f"s_add_u32 s5, s5, {L_GM}")
a(f"v_lshlrev_b32 v5, 3, v{V_HALF}"); a(f"v_add_u32 v{V_GMB}, s5, v5")
a(f"v_and_b32 v4, 3, v{V_N}"); a(f"v_mul_u32_u24 v4, {CHS}, v4"); a(f"v_lshlrev_b32 v5, 4, v{V_HALF}")
a(f"s_add_u32 s5, s4, {L_CH}"); a(f"v_add3_u32 v4, v4, v5, s5")
a(f"v_lshrrev_b32 v5, 2, v{V_N}"); a("v_lshlrev_b32 v5, 18, v5"); a(f"v_sub_u32 v{V_LC}, v4, v5")

def idx_reads():
    for i in range(4): a(f"ds_read_u16 v{DMA+2*i}, v{V_IDXB} offset:{64*(i>>1)+16*(i&1)}")
def dma_issue():
    out = []
    for i in range(4):
        out.append([f"s_add_u32 m0, s{S_STG}, {i*1024}", "s_nop 0", f"buffer_load_dwordx4 v[{DMA+2*i}:{DMA+2*i+1}], s[{SRD_BT}:{SRD_BT+3}], 0 idxen offen sc1 lds"])
    return out
def gm_reads():
    a(f"ds_read_b64 v[{GMR}:{GMR+1}], v{V_GMB}"); a(f"ds_read_b64 v[{GMR+2}:{GMR+3}], v{V_GMB} offset:16")
def afr_reads():
    for t in range(4): a(f"ds_read_b128 v[{AFR+4*t}:{AFR+4*t+3}], v{AFRA+t}")
def ext_reads():
    a(f"ds_read_b32 v{AEXT+2}, v{V_SEB}"); a(f"ds_read_u16 v{AEXT+3}, v{V_D2B}")
def ap_reads():
    a(f"v_add_u32 v{V_A0}, v{GMR+1}, v{V_COL}"); a(f"v_add_u32 v{V_A1}, v{GMR+3}, v{V_COL}")
    a(f"ds_read_b32 v{BEXT0}, v{V_A0}"); a(f"ds_read_b32 v{BEXT0+1}, v{V_A1}")
    a(f"ds_read_b32 v{BEXT1}, v{V_A0} offset:128"); a(f"ds_read_b32 v{BEXT1+1}, v{V_A1} offset:128")
def mf(d, A, B, c): return f"v_mfma_f32_32x32x16_bf16 v[{d}:{d+15}], v[{A}:{A+3}], v[{B}:{B+3}], " + (c if isinstance(c, str) else f"v[{c}:{c+15}]")
def chain(ct):
    d = D0 if ct == 0 else D1
    return [mf(d, AEXT, BEXT0 if ct == 0 else BEXT1, "0"), mf(d, AFR + 8 * ct, I0, d), mf(d, AFR + 8 * ct + 4, I1, d)]
def s2(ct):
    d = D2_0 if ct == 0 else D2_1
    return [mf(d, S_OP, MPK, d), mf(d, S_OP + 4, MPK + 4, d)]

idx_reads(); gm_reads()
a("s_waitcnt lgkmcnt(0)")
for grp in dma_issue():
    for x in grp: a(x)
a(f"v_add_u32 v{V_IDXB}, 128, v{V_IDXB}")
a(f"v_readfirstlane_b32 s{S_NODE0}, v{GMR}")
nop(1)
a(f"v_subrev_u32 v{V_LC}, s{S_NODE0}, v{V_LC}")
for r in range(8): a(f"v_mov_b32 v{S_OP+r}, 0")
for r in range(8): a(f"v_mov_b32 v{MPK+r}, 0")
for r in range(32): a(f"v_mov_b32 v{D2_0+r}, 0")
idx_reads()
ext_reads(); ap_reads()
a("s_waitcnt vmcnt(0)")
afr_reads()
a("s_waitcnt lgkmcnt(0)")
for grp in dma_issue():
    for x in grp: a(x)
a(f"v_add_u32 v{V_IDXB}, 128, v{V_IDXB}")
for x in chain(0): a(x)
a(f"v_add_u32 v{V_SEB}, 128, v{V_SEB}"); a(f"v_add_u32 v{V_D2B}, 64, v{V_D2B}")
nop(7); nop(3)

def run(kind, D):
    if kind == "E": return [f"v_exp_f32 v{TMP+i}, v{D+i}" for i in range(16)]
    if kind == "A": return [f"v_pk_add_f32 v[{TMP+2*i}:{TMP+2*i+1}], v[{TMP+2*i}:{TMP+2*i+1}], s[{S_ONE2}:{S_ONE2+1}]" for i in range(8)]
    if kind == "R": return [f"v_rcp_f32 v{TMP+i}, v{TMP+i}" for i in range(16)]
    if kind == "M": return [f"v_pk_mul_f32 v[{TMP+2*i}:{TMP+2*i+1}], v[{TMP+2*i}:{TMP+2*i+1}], v[{D+2*i}:{D+2*i+1}]" for i in range(8)]
    if kind == "C": return [f"v_cvt_pk_bf16_f32 v{MPK+i}, v{TMP+2*i}, v{TMP+2*i+1}" for i in range(8)]
def weave(base, ins):
    for i, x in enumerate(base):
        for y in ins.get(i, []): a(y)
        a(x)

loop_start = len(a.lines)
a.label("L_loop")
m2 = s2(1)
weave(run("E", D0), {0: [m2[0]], 4: [m2[1]]})
a(f"v_readlane_b32 s4, v{GMR+2}, 32")
a(f"s_sub_u32 s5, s4, s{S_NODE0}"); a(f"s_cmp_ge_u32 s5, {8<<18}"); a("s_cbranch_scc1 L_flushmid")
a.label("L_flushret")
pre = [f"v_add_u32 v{V_S0}, v{GMR}, v{V_LC}", f"v_add_u32 v{V_S1}, v{GMR+2}, v{V_LC}",
       f"ds_read_b128 v[{S_OP}:{S_OP+3}], v{V_S0}", f"ds_read_b128 v[{S_OP+4}:{S_OP+7}], v{V_S1} offset:32",
       f"v_add_u32 v{V_GMB}, 32, v{V_GMB}", f"v_add_u32 v{V_LC}, 64, v{V_LC}",
       f"ds_read_b64 v[{GMR}:{GMR+1}], v{V_GMB}", f"ds_read_b64 v[{GMR+2}:{GMR+3}], v{V_GMB} offset:16"]
for x in pre: a(x)
idx_reads()
weave(run("A", D0), {})
c1 = chain(1)
weave(run("R", D0), {0: [c1[0]], 4: [c1[1]], 8: [c1[2]]})
weave(run("M", D0), {})
weave(run("C", D0), {})
m2 = s2(0)
a("s_waitcnt vmcnt(0) lgkmcnt(0)")
afr_reads(); ext_reads(); ap_reads()
weave(run("E", D1), {2: [m2[0]], 6: [m2[1]]})
weave(run("A", D1), {})
a("s_waitcnt lgkmcnt(0)")
c0 = chain(0)
dm = dma_issue()
weave(run("R", D1), {0: [c0[0]] , 2: dm[0], 4: [c0[1]], 6: dm[1], 8: [c0[2]], 10: dm[2], 12: dm[3]})
weave(run("M", D1), {0: [f"v_add_u32 v{V_IDXB}, 128, v{V_IDXB}", f"v_add_u32 v{V_SEB}, 128, v{V_SEB}", f"v_add_u32 v{V_D2B}, 64, v{V_D2B}"]})
weave(run("C", D1), {})
a(f"s_add_u32 s{S_T}, s{S_T}, 1"); a(f"s_cmp_lt_u32 s{S_T}, s{S_T1}"); a("s_cbranch_scc1 L_loop")
loop_end = len(a.lines)
nop(1)
for x in s2(1): a(x)
def flush_body():
    nop(7); nop(7)
    a(f"s_lshr_b32 s4, s{S_NODE0}, 18")
    a(f"s_mul_i32 s5, s4, {MS}"); a(f"v_add_u32 v4, s5, v{V_FM}")
    a(f"s_mul_i32 s5, s4, {PS}"); a(f"v_add_u32 v5, s5, v{V_FP}")
    for ct in range(2):
        d = D2_0 if ct == 0 else D2_1
        for i in range(4): a(f"ds_add_f32 v4, v{d+4*i} offset:{i*2*MS+ct*128}")
    for i in range(4):
        for c in range(1, 4):
            a(f"v_mul_f32 v6, v{D2_0+4*i+c}, v{V_WX0}"); a(f"v_fmac_f32 v6, v{D2_1+4*i+c}, v{V_WX1}")
            a(f"ds_add_f32 v5, v6 offset:{i*2*PS+(c-1)*128}")
            nop(0)
flush_body()
a("s_waitcnt vmcnt(0) lgkmcnt(0)")
a("s_branch L_loopdone")
a.label("L_flushmid")
flush_body()
for r in range(32): a(f"v_mov_b32 v{D2_0+r}, 0")
a(f"v_readfirstlane_b32 s4, v{GMR}")
nop(1)
a(f"s_sub_u32 s5, s4, s{S_NODE0}"); a(f"s_mov_b32 s{S_NODE0}, s4")
a(f"v_subrev_u32 v{V_LC}, s5, v{V_LC}")
a("s_branch L_flushret")
a.label("L_loopdone")
a(f"s_cmp_eq_u32 s{S_MODE}, 0"); a("s_cbranch_scc1 L_epi")
a(f"s_add_u32 s{S_I}, s{S_I}, 1"); a(f"s_cmp_lt_u32 s{S_I}, 4"); a("s_cbranch_scc1 L_nextb")
a(f"s_mov_b32 s{S_I}, 0"); a(f"s_add_u32 s{S_R}, s{S_R}, 1")
a(f"s_lshl_b32 s4, s{S_R}, 5"); a(f"s_cmp_ge_u32 s4, s{S_MAXLEN}"); a("s_cbranch_scc1 L_epi")
a.label("L_nextb")
a("s_waitcnt vmcnt(0) lgkmcnt(0)")
barrier()
pos_dma()
se_prefill()
a(f"v_lshlrev_b32 v4, 2, v{V_LANE}"); a("v_mov_b32 v5, 0"); a(f"ds_write_b32 v4, v5 offset:{L_CNT2}")
a("s_waitcnt vmcnt(0) lgkmcnt(0)")
barrier()
a("s_branch L_batch")

a.label("L_epi")
barrier()
if STOP == "loop": dump_and_end("loop")
a(f"s_cmp_ge_u32 s{S_WAVE}, 4"); a("s_cbranch_scc1 L_epos")
MOP = 28; RAW = 44; HR = 76
a(f"s_lshr_b32 s4, s{S_WAVE}, 1"); a("s_lshl_b32 s5, s4, 5")
a(f"v_add_u32 v4, s5, v{V_N}")
a(f"v_mul_u32_u24 v5, {MS}, v4"); a(f"v_lshlrev_b32 v6, 5, v{V_HALF}"); a(f"v_add_u32 v5, v5, v6"); a(f"v_add_u32 v5, {L_MACC}, v5")
for t in range(4):
    a(f"ds_read_b128 v[{RAW+8*t}:{RAW+8*t+3}], v5 offset:{64*t}"); a(f"ds_read_b128 v[{RAW+8*t+4}:{RAW+8*t+7}], v5 offset:{64*t+16}")
a(f"v_lshrrev_b32 v6, 1, v{V_N}"); a("v_and_b32 v6, 7, v6")
a(f"s_and_b32 s6, s{S_WAVE}, 1"); a("s_lshl_b32 s7, s6, 2"); a("v_xor_b32 v6, s7, v6"); a("v_lshlrev_b32 v6, 4, v6")
a(f"v_lshlrev_b32 v7, 7, v4"); a(f"v_lshlrev_b32 v{X}, 3, v{V_HALF}"); a(f"v_add3_u32 v7, v7, v{X}, {0}"); a(f"v_add_u32 v7, {L_HROW}, v7")
for qd in range(4):
    a(f"v_xor_b32 v{X}, {16*qd}, v6"); a(f"v_add_u32 v{X}, v{X}, v7")
    a(f"ds_read_b64 v[{HR+2*qd}:{HR+2*qd+1}], v{X}")
a(f"s_mov_b32 s7, {NLN2:#x}")
a("s_waitcnt lgkmcnt(4)")
for t in range(4):
    for j in range(8): a(f"v_mul_f32 v{RAW+8*t+j}, s7, v{RAW+8*t+j}")
    for j in range(4): a(f"v_cvt_pk_bf16_f32 v{MOP+4*t+j}, v{RAW+8*t+2*j}, v{RAW+8*t+2*j+1}")
nop(1)
for t in range(4): a(mf(D3H, WHB + 4 * t, MOP + 4 * t, D3H))
a(f"s_mul_i32 s5, s{S_WG}, 40"); a("v_add_u32 v4, s5, v4"); a("v_lshlrev_b32 v4, 7, v4")
a("s_lshl_b32 s6, s6, 6"); a(f"v_lshlrev_b32 v5, 4, v{V_HALF}"); a("v_add3_u32 v4, v4, v5, s6")
a(f"s_mov_b32 s5, {NLOG2E:#x}"); a("s_mov_b32 s7, 0xffff0000")
a("s_waitcnt lgkmcnt(0)")
nop(7)
for r in range(16): a(f"v_mul_f32 v{RAW+r}, s5, v{D3H+r}")
for r in range(16): a(f"v_exp_f32 v{RAW+r}, v{RAW+r}")
for r in range(16): a(f"v_add_f32 v{RAW+r}, 1.0, v{RAW+r}")
for r in range(16): a(f"v_rcp_f32 v{RAW+r}, v{RAW+r}")
for qd in range(4):
    a(f"v_lshlrev_b32 v{RAW+16+4*qd}, 16, v{HR+2*qd}"); a(f"v_and_b32 v{RAW+16+4*qd+1}, s7, v{HR+2*qd}")
    a(f"v_lshlrev_b32 v{RAW+16+4*qd+2}, 16, v{HR+2*qd+1}"); a(f"v_and_b32 v{RAW+16+4*qd+3}, s7, v{HR+2*qd+1}")
for r in range(16): a(f"v_fmac_f32 v{RAW+16+r}, v{D3H+r}, v{RAW+r}")
for q in range(4):
    a(f"v_cvt_pk_bf16_f32 v{MOP+2*q}, v{RAW+16+4*q}, v{RAW+16+4*q+1}")
    a(f"v_cvt_pk_bf16_f32 v{MOP+2*q+1}, v{RAW+16+4*q+2}, v{RAW+16+4*q+3}")
nop(1)
for k in (0, 2):
    a(f"v_permlane32_swap_b32 v{MOP+2*k}, v{MOP+2*k+2}")
    a(f"v_permlane32_swap_b32 v{MOP+2*k+1}, v{MOP+2*k+3}")
a("s_cmp_eq_u32 s4, 0"); a("s_cselect_b32 s4, 32, 8")
a(f"v_cmp_gt_u32 vcc, s4, v{V_N}"); a("s_and_saveexec_b64 s[96:97], vcc")
a(f"global_store_dwordx4 v4, v[{MOP}:{MOP+3}], s[{S_OUT}:{S_OUT+1}]")
a(f"global_store_dwordx4 v4, v[{MOP+4}:{MOP+7}], s[{S_OUT}:{S_OUT+1}] offset:32")
a("s_endpgm")
a.label("L_epos")
a("v_subrev_u32 v4, 256, v0")
a("v_lshrrev_b32 v5, 1, v4"); a("v_and_b32 v6, 1, v4")
a("v_lshlrev_b32 v7, 7, v5"); a("v_lshlrev_b32 v6, 6, v6"); a(f"v_add_u32 v7, v7, v6"); a(f"v_add_u32 v7, {L_P32}, v7")
for k in range(4): a(f"ds_read_b128 v[{28+4*k}:{31+4*k}], v7 offset:{16*k}")
a("s_waitcnt lgkmcnt(0)")
for k in range(1, 4):
    for j in range(4): a(f"v_add_f32 v{28+j}, v{28+j}, v{28+4*k+j}")
a("v_add_f32 v28, v28, v29"); a("v_add_f32 v30, v30, v31"); a("v_add_f32 v28, v28, v30")
nop(1)
a("v_add_f32_dpp v28, v28, v28 quad_perm:[1,0,3,2] row_mask:0xf bank_mask:0xf")
a(f"v_add_f32 v28, v28, v{V_POS}")
a("v_cvt_pk_bf16_f32 v28, v28, v28")
a(f"s_mul_i32 s4, s{S_WG}, 240"); a(f"s_add_u32 s4, s4, 1280000")
a("v_lshlrev_b32 v5, 1, v5"); a("v_add_u32 v5, s4, v5")
a("v_and_b32 v6, 1, v4"); a("v_cmp_gt_u32 vcc, 240, v4"); a("s_mov_b64 s[96:97], vcc"); a("v_cmp_eq_u32 vcc, 0, v6"); a("s_and_b64 vcc, vcc, s[96:97]")
a("s_and_saveexec_b64 s[96:97], vcc")
a(f"global_store_short v5, v28, s[{S_OUT}:{S_OUT+1}]")
a.label("L_end")
a("s_endpgm")

probs = check_hazards(a.lines)
probs += check_hazards(a.lines[loop_start:loop_end] * 2)
seen = set()
for p in probs:
    if p not in seen: print("HAZARD", p, file=sys.stderr); seen.add(p)

hdr = f"""; gather/scatter EGNN layer, fused single kernel (generated by work/gen.py)
; @launch grid=({NWG},1,1) block=(512,1,1) lds={L_END}
.amdgcn_target "amdgcn-amd-amdhsa--gfx950"
.text
.globl {NAME}_kernel
.p2align 8
.type {NAME}_kernel,@function
"""
ftr = f"""
.section .rodata,"a"
.p2align 6
.amdhsa_kernel {NAME}_kernel
  .amdhsa_next_free_vgpr 256
  .amdhsa_next_free_sgpr 102
  .amdhsa_accum_offset 256
  .amdhsa_group_segment_fixed_size 0
  .amdhsa_kernarg_size 88
  .amdhsa_user_sgpr_count 2
  .amdhsa_user_sgpr_kernarg_segment_ptr 1
  .amdhsa_system_sgpr_workgroup_id_x 1
.end_amdhsa_kernel
"""
open(OUT, "w").write(hdr + a.text() + ftr)
print("wrote", OUT, len(a.lines), "lines")
```
